```python
import torch

def _softmax(x, axis=-1):
    return torch.softmax(x, dim=axis)
def _gelu(x):
    return torch.nn.functional.gelu(x, approximate="tanh")
def _silu(x):
    return torch.nn.functional.silu(x)
def _sigmoid(x):
    return torch.sigmoid(x)
def _layernorm(x, axis=-1, eps=1e-5):
    m = x.mean(dim=axis, keepdim=True)
    v = x.var(dim=axis, keepdim=True, unbiased=False)
    return (x - m) / torch.sqrt(v + eps)
def _scatter_add(tgt, idx, src, axis=0):
    return tgt.clone().index_add_(axis, idx, src)
def _segment_sum(src, seg, n):
    out = torch.zeros((n,) + src.shape[1:], dtype=src.dtype)
    return out.index_add_(0, seg, src)
def _pad(x, pw):
    flat = tuple(v for pair in reversed(pw) for v in pair)
    return torch.nn.functional.pad(x, flat)

kernel_name = 'recurrent_scan__ssm_conv_h3__mixer_channel_mlp__prompt'

def setup_inputs():

    _w = (lambda a: (lambda t: t.to(torch.bfloat16) if t.is_floating_point() else t)(torch.as_tensor(a)))
    def _A_setup():
        B, S, D = 1, 2048, 512
        ks = 4
        return {
            "q": _w((lambda *s: torch.randn(*s, dtype=torch.bfloat16) * 0.05)(B, S, D)),
            "k": _w((lambda *s: torch.randn(*s, dtype=torch.bfloat16) * 0.8)(B, S, D)),
            "v": _w((lambda *s: torch.randn(*s, dtype=torch.bfloat16) * 0.8)(B, S, D)),
            "shift_k": _w((lambda *s: torch.randn(*s, dtype=torch.bfloat16) * 0.8)(D, ks) * 0.5),
            "ssm_k": _w((lambda *s: torch.randn(*s, dtype=torch.bfloat16) * 0.8)(D, S) * (1.0 / S ** 0.5)),
            "ssm_D": _w((lambda *s: torch.randn(*s, dtype=torch.bfloat16) * 0.8)(D)),
        }
    _A_in = _A_setup()

    def _B_setup():
        B, S, D, F = 1, 2048, 512, 1792
        return {
            "x": _w((lambda *s: torch.randn(*s, dtype=torch.bfloat16) * 0.05)(B, S, D)),
            "w1": _w((lambda *s: torch.randn(*s, dtype=torch.bfloat16) * 0.8)(D, F) * (D ** -0.5)),
            "b1": _w((lambda *s: torch.randn(*s, dtype=torch.bfloat16) * 0.4)(F)),
            "w2": _w((lambda *s: torch.randn(*s, dtype=torch.bfloat16) * 0.2)(F, D) * (F ** -0.5)),
            "b2": _w((lambda *s: torch.randn(*s, dtype=torch.bfloat16) * 0.2)(D)),
        }
    _B_in = _B_setup()

    return {
        "A_q": _A_in["q"],
        "A_k": _A_in["k"],
        "A_v": _A_in["v"],
        "A_shift_k": _A_in["shift_k"],
        "A_ssm_k": _A_in["ssm_k"],
        "A_ssm_D": _A_in["ssm_D"],
        "B_x": _B_in["x"],
        "B_w1": _B_in["w1"],
        "B_b1": _B_in["b1"],
        "B_w2": _B_in["w2"],
        "B_b2": _B_in["b2"],
    }

def reference(A_q, A_k, A_v, A_shift_k, A_ssm_k, A_ssm_D, B_x, B_w1, B_b1, B_w2, B_b2):
    def _A_ref(q, k, v, shift_k, ssm_k, ssm_D):
        B, S, D = q.shape
        ks = shift_k.shape[-1]
        k_pad = _pad(k, ((0, 0), (ks - 1, 0), (0, 0)))
        k_shift = torch.zeros_like(k)
        for t in range(ks):
            k_shift = k_shift + k_pad[:, t:t + S, :] * shift_k[:, ks - 1 - t][None, None, :]
        kv = k_shift * v
        L = 2 * S
        kv_pad = _pad(kv, ((0, 0), (0, S), (0, 0)))
        kf_pad = _pad(ssm_k, ((0, 0), (0, S)))
        kv_f = (lambda x, axes=(-2,-1): torch.fft.rfft2(x.float(), dim=axes))(kv_pad[:, None, :, :], axes=(1, 2))
        kf_f = (lambda x, axes=(-2,-1): torch.fft.rfft2(x.float(), dim=axes))(kf_pad[:, None, :], axes=(1, 2))
        kf_f = (lambda x, *d: x.permute(*d))(kf_f, 1, 2, 0)
        y_f = kv_f * kf_f[None, :, :, :]
        y = (lambda x, s, axes=(-2,-1): torch.fft.irfft2(x, s=s, dim=axes).to(torch.bfloat16))(y_f, (1, L), axes=(1, 2))[:, 0, :S, :]
        y = y + kv * ssm_D[None, None, :]
        return q * y

    def _B_ref(x, w1, b1, w2, b2):
        y = _layernorm(x, axis=-1)
        h = _gelu(torch.einsum("bsd,df->bsf", y, w1) + b1)
        return torch.einsum("bsf,fd->bsd", h, w2) + b2

    x = A_q
    xn = _layernorm(x, axis=-1)
    s = _A_ref(xn, A_k, A_v, A_shift_k, A_ssm_k, A_ssm_D)
    g = _silu(_B_ref(xn, B_w1, B_b1, B_w2, B_b2))
    return x + s * g
```

```python
import re

REG_RE = re.compile(r"\b([vsa])\[(\d+):(\d+)\]|\b([vsa])(\d+)\b|\b(vcc|exec|m0|scc)\b")

def regs_of(tok):
    out = set()
    for m in REG_RE.finditer(tok):
        if m.group(1):
            for r in range(int(m.group(2)), int(m.group(3)) + 1): out.add((m.group(1), r))
        elif m.group(4):
            out.add((m.group(4), int(m.group(5))))
        else:
            out.add((m.group(6), 0))
    return out

def split_ops(s):
    ops, depth, cur = [], 0, ""
    for ch in s:
        if ch == "[": depth += 1
        if ch == "]": depth -= 1
        if ch == "," and depth == 0:
            ops.append(cur.strip()); cur = ""
        else:
            cur += ch
    if cur.strip(): ops.append(cur.strip())
    return ops

TRANS = ("v_exp_", "v_log_", "v_rcp_", "v_rsq_", "v_sqrt_", "v_sin_", "v_cos_")

class Ins:
    def __init__(self, text):
        self.text = text
        t = text.split(";")[0].strip()
        self.is_label = t.endswith(":")
        self.is_dir = t.startswith(".")
        parts = t.split(None, 1)
        self.mn = parts[0] if parts else ""
        rest = parts[1] if len(parts) > 1 else ""
        self.ops = split_ops(rest)
        mn = self.mn
        self.valu = mn.startswith("v_") and not mn.startswith("v_mfma")
        self.mfma = mn.startswith("v_mfma")
        self.vmem = mn.startswith(("buffer_", "global_"))
        self.ds = mn.startswith("ds_")
        self.salu = mn.startswith("s_")
        self.trans = mn.startswith(TRANS)
        self.dpp = "row_" in rest or "quad_perm" in rest or "wave_" in rest
        self.lds_dma = self.vmem and re.search(r"\blds\b", rest) is not None
        self.dst, self.src = set(), set()
        ops = self.ops
        if self.is_label or self.is_dir or not mn: return
        if self.valu or self.mfma:
            nd = 1
            if mn.startswith(("v_add_co", "v_sub_co", "v_addc_co", "v_subb_co", "v_subrev_co", "v_div_scale", "v_mad_u64")): nd = 2
            for o in ops[:nd]: self.dst |= regs_of(o)
            for o in ops[nd:]: self.src |= regs_of(o)
            if mn.startswith(("v_fmac", "v_dot2c", "v_pk_fmac", "v_permlane", "v_swap")) or "d16_hi" in mn or self.dpp: self.src |= regs_of(ops[0])
            if mn.startswith(("v_permlane32_swap", "v_permlane16_swap", "v_swap")): self.dst |= regs_of(ops[1])
            if mn.startswith("v_cndmask") and len(ops) == 3: self.src.add(("vcc", 0))
            if mn.startswith("v_cmpx"): self.dst.add(("exec", 0))
        elif self.vmem:
            if "load" in mn and not self.lds_dma:
                self.dst |= regs_of(ops[0])
                for o in ops[1:]: self.src |= regs_of(o)
            else:
                for o in ops: self.src |= regs_of(o)
            if self.lds_dma: self.src.add(("m0", 0))
        elif self.ds:
            if mn.startswith(("ds_read", "ds_bpermute", "ds_permute", "ds_swizzle")) or "_rtn" in mn:
                self.dst |= regs_of(ops[0])
                for o in ops[1:]: self.src |= regs_of(o)
            else:
                for o in ops: self.src |= regs_of(o)
        elif self.salu:
            if mn.startswith(("s_cmp", "s_cbranch", "s_branch", "s_waitcnt", "s_nop", "s_barrier", "s_endpgm", "s_sleep", "s_setprio", "s_bitcmp")):
                for o in ops: self.src |= regs_of(o)
            else:
                if ops: self.dst |= regs_of(ops[0])
                for o in ops[1:]: self.src |= regs_of(o)
                if "saveexec" in mn: self.dst.add(("exec", 0))
    def states(self):
        if self.is_label or self.is_dir or not self.mn: return 0
        if self.mn == "s_nop": return int(self.ops[0], 0) + 1
        return 1
    def mfma_passes(self):
        if "32x32x16" in self.mn: return 8
        if "16x16x32" in self.mn: return 4
        raise ValueError(self.mn)

def vg(s): return {r for r in s if r[0] in "va"}
def sg(s): return {r for r in s if r[0] in ("s", "vcc")}

def required(prev, cur):
    n = 0
    if prev.valu:
        if cur.mfma and (vg(prev.dst) & vg(cur.src)): n = max(n, 2)
        if cur.vmem and (sg(prev.dst) & sg(cur.src)): n = max(n, 5)
        if cur.valu and cur.dpp and (vg(prev.dst) & vg(cur.src)): n = max(n, 2)
        if cur.valu and cur.mn.startswith("v_permlane") and (vg(prev.dst) & vg(cur.src)): n = max(n, 2)
        if cur.valu and cur.mn.startswith(("v_readlane", "v_readfirstlane")) and (vg(prev.dst) & vg(cur.src)): n = max(n, 1)
        if cur.valu and cur.mn.startswith(("v_readlane", "v_writelane")) and (sg(prev.dst) & sg(cur.src)): n = max(n, 4)
        if (cur.valu or cur.mfma) and (sg(prev.dst) & sg(cur.src)): n = max(n, 2)
        if cur.salu and (sg(prev.dst) & sg(cur.src)): n = max(n, 1)
        if prev.trans and (cur.valu or cur.mfma) and (vg(prev.dst) & (vg(cur.src) | vg(cur.dst))): n = max(n, 1)
        if prev.trans and (cur.vmem or cur.ds) and (vg(prev.dst) & vg(cur.src)): n = max(n, 1)
        if ("exec", 0) in prev.dst and (cur.mfma or cur.dpp or cur.mn.startswith(("v_readlane", "v_readfirstlane", "v_permlane"))): n = max(n, 5)
        if ("op_sel" in prev.text or "sdwa" in prev.text) and cur.valu and (vg(prev.dst) & (vg(cur.src) | vg(cur.dst))): n = max(n, 1)
        if prev.mn.startswith("v_dot") and (cur.valu or cur.mfma or cur.vmem or cur.ds):
            if vg(prev.dst) & (vg(cur.src) | vg(cur.dst)):
                same = cur.mn == prev.mn and len(cur.ops) >= 3 and not (vg(prev.dst) & (regs_of(cur.ops[1]) | regs_of(cur.ops[2])))
                if not same: n = max(n, 3)
    if prev.mfma:
        p = prev.mfma_passes()
        d = vg(prev.dst)
        if cur.mfma:
            srcC = vg(regs_of(cur.ops[3])); srcAB = vg(regs_of(cur.ops[1]) | regs_of(cur.ops[2]))
            if d & srcAB: n = max(n, {4: 8, 8: 12}[p])
            if d & srcC and not (srcC == d and cur.mfma_passes() == p): n = max(n, {4: 6, 8: 10}[p])
            if d & vg(cur.dst) and not (d & srcC): n = max(n, {4: 8, 8: 12}[p])
        elif cur.valu or cur.vmem or cur.ds:
            if d & (vg(cur.src) | vg(cur.dst)): n = max(n, {4: 8, 8: 12}[p])
            if cur.valu:
                srcC = vg(regs_of(prev.ops[3]))
                if srcC & vg(cur.dst): n = max(n, {4: 3, 8: 7}[p])
    if prev.salu and ("m0", 0) in prev.dst and cur.lds_dma: n = max(n, 1)
    if prev.vmem and "store" in prev.mn and ("x4" in prev.mn or "x3" in prev.mn):
        data = vg(regs_of(prev.ops[0] if prev.mn.startswith("buffer") else prev.ops[1]))
        if data & vg(cur.dst): n = max(n, 2)
    if prev.ds and prev.mn.startswith("ds_write") and ("b128" in prev.mn or "b96" in prev.mn):
        data = vg(regs_of(prev.ops[1]))
        if data & vg(cur.dst) and cur.valu: n = max(n, 1)
    return n

class Emitter:
    def __init__(self):
        self.lines = []
    def __call__(self, text):
        for l in text.split("\n"):
            l = l.strip()
            if l: self.lines.append(l)
    def comment(self, c): self.lines.append("; " + c)
    def finish(self):
        out = []
        for l in self.lines:
            if l.startswith(";"):
                out.append(Ins(l)); continue
            cur = Ins(l)
            if cur.mn and not cur.is_label and not cur.is_dir:
                need, dist = 0, 0
                for p in reversed(out):
                    if dist > 24: break
                    if p.mn and not p.is_label and not p.is_dir and not p.text.startswith(";"):
                        r = required(p, cur)
                        if r - dist > need: need = r - dist
                    dist += p.states() if not p.text.startswith(";") else 0
                while need > 0:
                    k = min(need, 16)
                    out.append(Ins(f"s_nop {k-1}")); need -= k
            out.append(cur)
        return "\n".join(("    " + i.text if not i.is_label else i.text) for i in out)
```

```python
import sys, struct
from emit import Emitter
NAME = "recurrent_scan__ssm_conv_h3__mixer_channel_mlp__prompt"

def f32(x): return "0x%08x" % struct.unpack("<I", struct.pack("<f", x))[0]

WS_UT, WS_Z, WS_ST, WS_FL, WS_H = 0x000000, 0x200000, 0x400000, 0x410000, 0x500000
WS_SIZE = 0x1000000
S_WS, S_X, S_K, S_V, S_SH, S_SSM, S_W1, S_W2, S_OUT, S_B1, S_B2 = [f"s[{b}:{b+3}]" for b in (4, 8, 12, 16, 20, 24, 28, 32, 36, 40, 44)]
sW, sXCD, sJ, sMASK = "s48", "s49", "s50", "s51"
L_RING = 0
L_MISC = 131072
L_TR = L_MISC
L_CS = L_MISC + 8192
L_B1 = L_CS + 512
L_UB = L_MISC + 10240
UB_STRIDE = 4608
L_ZL = L_MISC + 20480
L_HC = 0
HC_STRIDE = 4160
L_RB = 65536
L_RB2 = 0
LDS_BYTES = 163840

def prologue(A, tag):
    A(f"s_cmp_ge_u32 s2, 256\ns_cbranch_scc1 L_end_{tag}")
    A("s_load_dwordx16 s[64:79], s[0:1], 0")
    A("s_load_dwordx8 s[80:87], s[0:1], 64")
    A("s_load_dwordx4 s[88:91], s[0:1], 96")
    A("v_and_b32 v1, 63, v0\nv_lshrrev_b32 v2, 6, v0")
    A(f"v_readfirstlane_b32 {sW}, v2")
    A(f"s_and_b32 {sXCD}, s2, 7\ns_lshr_b32 {sJ}, s2, 3\ns_mov_b32 {sMASK}, 0xffff0000")
    A("s_waitcnt lgkmcnt(0)")
    def srd(base, src, nbytes):
        A(f"s_mov_b32 s{base}, s{src}\ns_mov_b32 s{base+1}, s{src+1}\ns_mov_b32 s{base+2}, {nbytes}\ns_mov_b32 s{base+3}, 0x20000")
    srd(4, 90, WS_SIZE); srd(8, 64, 2097152); srd(12, 66, 2097152); srd(16, 68, 2097152); srd(20, 70, 4096)
    srd(24, 72, 2097152); srd(28, 78, 1835008); srd(32, 82, 1835008); srd(36, 86, 2097152); srd(40, 80, 3584); srd(44, 84, 1024)

def unpack(A, lo, hi, src):
    A(f"v_lshlrev_b32 {lo}, 16, {src}\nv_and_b32 {hi}, {sMASK}, {src}")

def rbf(A, dst, src):
    A(f"v_cvt_pk_bf16_f32 {dst}, {src}, {src}\nv_lshlrev_b32 {dst}, 16, {dst}")

def wave_sum(A, v, sdst):
    for m in ("row_shr:1", "row_shr:2", "row_shr:4", "row_shr:8"):
        A(f"v_add_f32_dpp {v}, {v}, {v} {m} row_mask:0xf bank_mask:0xf bound_ctrl:0")
    A(f"v_add_f32_dpp {v}, {v}, {v} row_bcast:15 row_mask:0xa bank_mask:0xf")
    A(f"v_add_f32_dpp {v}, {v}, {v} row_bcast:31 row_mask:0xc bank_mask:0xf")
    A(f"v_readlane_b32 {sdst}, {v}, 63")

def phase_p0(A, sc=""):
    A.comment("P0: kv tile (tt = wg>>3, dt = wg&7) + row stats")
    A("v_lshrrev_b32 v2, 3, v0\nv_and_b32 v3, 7, v0")
    A(f"s_lshl_b32 s52, {sJ}, 6\ns_lshl_b32 s53, {sXCD}, 7")
    A("v_add_u32 v4, s52, v2\nv_lshlrev_b32 v4, 10, v4\nv_lshlrev_b32 v8, 4, v3\nv_add_u32 v4, v4, v8\nv_add_u32 v4, s53, v4")
    A("v_add_u32 v5, 0xfffffc00, v4\nv_add_u32 v6, 0xfffff800, v4\nv_add_u32 v7, 0xfffff400, v4")
    A(f"s_lshl_b32 s54, s2, 3\ns_add_u32 s54, s54, {sW}\ns_lshl_b32 s55, s54, 10")
    A("v_lshlrev_b32 v9, 4, v1")
    A(f"buffer_load_dwordx4 v[56:59], v9, {S_X}, s55 offen")
    A(f"buffer_load_dwordx4 v[16:19], v7, {S_K}, 0 offen")
    A(f"buffer_load_dwordx4 v[20:23], v6, {S_K}, 0 offen")
    A(f"buffer_load_dwordx4 v[24:27], v5, {S_K}, 0 offen")
    A(f"buffer_load_dwordx4 v[28:31], v4, {S_K}, 0 offen")
    A(f"buffer_load_dwordx4 v[32:35], v4, {S_V}, 0 offen")
    A(f"v_lshlrev_b32 v8, 6, v3\ns_lshl_b32 s56, {sXCD}, 9")
    for i in range(4):
        A(f"buffer_load_dwordx4 v[{36+4*i}:{39+4*i}], v8, {S_SH}, s56 offen offset:{16*i}")
    A("s_waitcnt vmcnt(9)")
    for i in range(4): unpack(A, f"v{60+2*i}", f"v{61+2*i}", f"v{56+i}")
    A("v_add_f32 v68, v60, v61\nv_add_f32 v69, v62, v63\nv_add_f32 v70, v64, v65\nv_add_f32 v71, v66, v67")
    A("v_add_f32 v68, v68, v69\nv_add_f32 v70, v70, v71\nv_add_f32 v68, v68, v70")
    wave_sum(A, "v68", "s57")
    A(f"v_mov_b32 v72, {f32(1/512)}\nv_mul_f32 v73, s57, v72")
    for i in range(8): A(f"v_sub_f32 v{60+i}, v{60+i}, v73")
    A("v_mul_f32 v68, v60, v60\nv_mul_f32 v69, v61, v61")
    for i in range(2, 8): A(f"v_fmac_f32 v{68+(i&1)}, v{60+i}, v{60+i}")
    A("v_add_f32 v68, v68, v69")
    wave_sum(A, "v68", "s57")
    A("v_mul_f32 v74, s57, v72")
    rbf(A, "v62", "v73")
    rbf(A, "v75", "v74")
    A(f"v_add_f32 v75, {f32(1e-5)}, v75"); rbf(A, "v75", "v75")
    A("v_sqrt_f32 v75, v75"); rbf(A, "v75", "v75")
    A("v_rcp_f32 v63, v75")
    A("v_sub_f32 v76, v73, v62\nv_mul_f32 v76, v76, v63"); rbf(A, "v76", "v76")
    A("v_mul_f32 v77, v74, v63\nv_mul_f32 v77, v77, v63"); rbf(A, "v77", "v77")
    A(f"v_add_f32 v77, {f32(1e-5)}, v77"); rbf(A, "v77", "v77")
    A("v_sqrt_f32 v77, v77"); rbf(A, "v77", "v77")
    A("v_rcp_f32 v77, v77")
    A("v_mul_f32 v60, v63, v77")
    A("v_fma_f32 v61, v62, v63, v76\nv_mul_f32 v61, v61, v77\nv_sub_f32 v61, 0, v61")
    A(f"s_lshl_b32 s55, s54, 4\ns_add_u32 s55, s55, {WS_ST}\nv_mov_b32 v9, 0")
    A("v_cmp_eq_u32 vcc, 0, v1\ns_and_saveexec_b64 s[58:59], vcc")
    A(f"buffer_store_dwordx4 v[60:63], v9, {S_WS}, s55 offen{sc}")
    A("s_mov_b64 exec, s[58:59]")
    A("s_waitcnt vmcnt(1)")
    for p in range(4):
        wa, wb = 36 + 4 * p, 38 + 4 * p
        for step, (kreg, tap) in enumerate(((16, 3), (20, 2), (24, 1), (28, 0))):
            unpack(A, "v64", "v65", f"v{kreg+p}")
            ra, rb_ = wa + (tap >> 1), wb + (tap >> 1)
            if tap & 1:
                A(f"v_and_b32 v66, {sMASK}, v{ra}\nv_and_b32 v67, {sMASK}, v{rb_}")
            else:
                A(f"v_lshlrev_b32 v66, 16, v{ra}\nv_lshlrev_b32 v67, 16, v{rb_}")
            A("v_mul_f32 v64, v64, v66\nv_mul_f32 v65, v65, v67\nv_cvt_pk_bf16_f32 v64, v64, v65")
            if step == 0:
                unpack(A, "v68", "v69", "v64")
            else:
                A(f"v_and_b32 v65, {sMASK}, v64\nv_lshlrev_b32 v64, 16, v64")
                A("v_add_f32 v68, v68, v64\nv_add_f32 v69, v69, v65\nv_cvt_pk_bf16_f32 v64, v68, v69")
                unpack(A, "v68", "v69", "v64")
        unpack(A, "v64", "v65", f"v{32+p}")
        A(f"v_mul_f32 v68, v68, v64\nv_mul_f32 v69, v69, v65\nv_cvt_pk_bf16_f32 v{52+p}, v68, v69")
    A("v_sub_u32 v10, 63, v2\nv_lshrrev_b32 v11, 3, v10\nv_xor_b32 v11, v11, v3\nv_lshlrev_b32 v11, 4, v11")
    A("v_and_b32 v10, 7, v10\nv_lshlrev_b32 v10, 1, v10\nv_add_u32 v10, v10, v11\nv_lshlrev_b32 v11, 10, v3\nv_add_u32 v10, v10, v11")
    A(f"v_add_u32 v10, {L_TR}, v10")
    for p in range(4):
        A(f"ds_write_b16 v10, v{52+p} offset:{256*p}")
        A(f"ds_write_b16_d16_hi v10, v{52+p} offset:{256*p+128}")
    A("s_waitcnt lgkmcnt(0)\ns_barrier")
    A("v_lshrrev_b32 v11, 3, v2\nv_xor_b32 v11, v11, v3\nv_lshlrev_b32 v11, 4, v11\nv_lshlrev_b32 v10, 7, v2\nv_add_u32 v10, v10, v11")
    A(f"ds_read_b128 v[52:55], v10 offset:0" if L_TR == 0 else f"v_add_u32 v10, {L_TR}, v10\nds_read_b128 v[52:55], v10")
    A(f"v_lshlrev_b32 v10, 12, v2\nv_lshlrev_b32 v11, 4, v3\nv_add_u32 v10, v10, v11")
    A(f"s_lshl_b32 s55, {sXCD}, 18\ns_lshl_b32 s56, s52, 1\ns_sub_u32 s55, s55, s56\ns_add_u32 s55, s55, {WS_UT + 3968}")
    A("s_waitcnt lgkmcnt(0)")
    A(f"buffer_store_dwordx4 v[52:55], v10, {S_WS}, s55 offen{sc}")

ACC1 = 64
def phase_gemm1(A, tag, sc=""):
    A.comment("GEMM1: D'[f][t] tile 128f x 128t; wave (tw=w&3, fw=w>>2)")
    A(f"s_cmp_ge_u32 {sJ}, 28\ns_cbranch_scc1 L_g1_done_{tag}")
    A(f"s_lshr_b32 s52, {sXCD}, 1\ns_lshl_b32 s52, s52, 2\ns_and_b32 s55, {sJ}, 3\ns_add_u32 s52, s52, s55")
    A(f"s_and_b32 s53, {sXCD}, 1\ns_mul_i32 s53, s53, 7\ns_lshr_b32 s56, {sJ}, 2\ns_add_u32 s53, s53, s56")
    A("s_lshl_b32 s54, s55, 1\ns_add_u32 s54, s54, s56")
    A("v_lshrrev_b32 v3, 3, v1\nv_and_b32 v4, 7, v1\nv_lshrrev_b32 v5, 4, v1")
    A(f"s_lshl_b32 s55, s52, 7\ns_lshl_b32 s56, {sW}, 4\ns_add_u32 s55, s55, s56")
    A("v_add_u32 v6, s55, v3\nv_lshlrev_b32 v6, 10, v6")
    A("v_xor_b32 v7, v4, v5\nv_lshlrev_b32 v7, 4, v7\nv_add_u32 v10, v6, v7")
    A("v_add_u32 v8, 4, v5\nv_xor_b32 v8, v4, v8\nv_lshlrev_b32 v8, 4, v8\nv_add_u32 v11, v6, v8\nv_add_u32 v11, 8192, v11")
    A("v_and_b32 v4, 15, v1\nv_lshlrev_b32 v7, 2, v5\nv_xor_b32 v4, v4, v7\nv_lshlrev_b32 v4, 4, v4")
    A(f"s_lshl_b32 s56, {sW}, 3\nv_add_u32 v6, s56, v5\nv_mul_u32_u24 v6, 3584, v6\nv_add_u32 v12, v6, v4")
    A("s_lshl_b32 s56, s53, 8\nv_add_u32 v12, s56, v12")
    A(f"s_lshl_b32 s57, {sW}, 11")
    def issue(it_imm=None, it_reg=None):
        if it_imm is not None:
            A(f"s_add_u32 s58, s54, {it_imm}\ns_add_u32 s59, s57, {(it_imm & 3) * 32768 + L_RING}")
        else:
            A(f"s_add_u32 s58, s54, {it_reg}\ns_and_b32 s59, {it_reg}, 3\ns_lshl_b32 s59, s59, 15\ns_add_u32 s59, s59, s57")
        A("s_and_b32 s58, s58, 7\ns_lshl_b32 s60, s58, 7\ns_mov_b32 m0, s59")
        A(f"buffer_load_dwordx4 v10, {S_X}, s60 offen lds")
        A("s_add_u32 s61, s59, 1024\ns_mov_b32 m0, s61")
        A(f"buffer_load_dwordx4 v11, {S_X}, s60 offen lds")
        A(f"s_mul_i32 s60, s58, {64*3584}\ns_add_u32 s61, s59, 16384\ns_mov_b32 m0, s61")
        A(f"buffer_load_dwordx4 v12, {S_W1}, s60 offen lds")
        A("s_add_u32 s60, s60, 14336\ns_add_u32 s61, s59, 17408\ns_mov_b32 m0, s61")
        A(f"buffer_load_dwordx4 v12, {S_W1}, s60 offen lds")
    for it in range(4): issue(it_imm=it)
    A("v_lshlrev_b32 v13, 1, v0\ns_lshl_b32 s56, s53, 8")
    A("v_cmp_gt_u32 vcc, 128, v0\ns_and_saveexec_b64 s[62:63], vcc\ns_cbranch_execz L_g1_tab_" + tag)
    A(f"buffer_load_ushort v14, v13, {S_B1}, s56 offen")
    A(f"v_lshlrev_b32 v15, 2, v0\nv_add_u32 v15, {L_CS}, v15\nv_mov_b32 v16, 0\nds_write_b32 v15, v16")
    A("s_waitcnt vmcnt(0)\nv_lshlrev_b32 v14, 16, v14\nds_write_b32 v15, v14 offset:512")
    A(f"L_g1_tab_{tag}:\ns_mov_b64 exec, s[62:63]")
    A(f"s_and_b32 s62, {sW}, 3\ns_lshr_b32 s63, {sW}, 2")
    A("v_and_b32 v3, 31, v1\nv_lshrrev_b32 v4, 5, v1")
    A("s_lshl_b32 s56, s62, 5\nv_add_u32 v5, s56, v3\nv_lshlrev_b32 v5, 7, v5")
    A("v_lshrrev_b32 v6, 1, v3\nv_and_b32 v6, 7, v6")
    for ks in range(4):
        A(f"v_add_u32 v7, {2*ks}, v4\nv_xor_b32 v7, v7, v6\nv_lshlrev_b32 v7, 4, v7\nv_add_u32 v{20+ks}, v5, v7")
    A("v_lshrrev_b32 v5, 4, v1\nv_and_b32 v5, 1, v5\nv_lshrrev_b32 v6, 2, v1\nv_and_b32 v6, 3, v6\nv_and_b32 v7, 3, v1")
    A("v_lshlrev_b32 v8, 3, v4\nv_add_u32 v8, v8, v6\nv_lshlrev_b32 v8, 8, v8")
    A("v_and_b32 v9, 1, v7\nv_lshlrev_b32 v9, 3, v9\nv_add_u32 v8, v8, v9\nv_add_u32 v8, 16384, v8")
    A("v_lshlrev_b32 v5, 1, v5\nv_lshrrev_b32 v7, 1, v7\nv_add_u32 v5, v5, v7")
    for ft in range(2):
        A(f"s_lshl_b32 s56, s63, 1\ns_add_u32 s56, s56, {ft}\nv_xor_b32 v9, s56, v6\nv_lshlrev_b32 v9, 2, v9\nv_add_u32 v9, v9, v5\nv_lshlrev_b32 v9, 4, v9\nv_add_u32 v{24+ft}, v8, v9")
    for r in range(32): A(f"v_mov_b32 v{ACC1+r}, 0")
    A("v_mov_b32 v32, 0\nv_mov_b32 v33, 0\nv_mov_b32 v34, 0x3f803f80")
    A("s_mov_b32 s92, 0")
    A(f"L_g1_loop_{tag}:")
    A(f"s_cmp_lt_u32 s92, 6\ns_cbranch_scc1 L_g1_w8_{tag}\ns_waitcnt vmcnt(0)\ns_branch L_g1_w_{tag}\nL_g1_w8_{tag}:\ns_waitcnt vmcnt(8)\nL_g1_w_{tag}:")
    A("s_waitcnt lgkmcnt(0)\ns_barrier")
    A(f"s_add_u32 s93, s92, 3\ns_cmp_eq_u32 s92, 0\ns_cbranch_scc1 L_g1_ni_{tag}\ns_cmp_gt_u32 s92, 4\ns_cbranch_scc1 L_g1_ni_{tag}")
    issue(it_reg="s93")
    A(f"L_g1_ni_{tag}:")
    A("s_and_b32 s93, s92, 3\ns_lshl_b32 s93, s93, 15")
    for i in range(6): A(f"v_add_u32 v{26+i}, s93, v{20+i}")
    FR = [36, 48]
    def reads(ks):
        b = FR[ks & 1]
        A(f"ds_read_b128 v[{b}:{b+3}], v{26+ks}")
        for ft in range(2):
            for j in range(2):
                A(f"ds_read_b64_tr_b16 v[{b+4+4*ft+2*j}:{b+5+4*ft+2*j}], v{30+ft} offset:{(16*ks+4*j)*256}")
    reads(0)
    for ks in range(4):
        if ks < 3:
            reads(ks + 1); A("s_waitcnt lgkmcnt(5)")
        else:
            A("s_waitcnt lgkmcnt(0)")
        b = FR[ks & 1]
        for ft in range(2):
            A(f"v_mfma_f32_32x32x16_bf16 v[{ACC1+16*ft}:{ACC1+16*ft+15}], v[{b+4+4*ft}:{b+7+4*ft}], v[{b}:{b+3}], v[{ACC1+16*ft}:{ACC1+16*ft+15}]")
        A(f"s_cmp_lg_u32 s62, {ks}\ns_cbranch_scc1 L_g1_ncs{ks}_{tag}")
        for i in range(4):
            for ft in range(2):
                A(f"v_dot2_f32_bf16 v{32+ft}, v{b+4+4*ft+i}, v34, v{32+ft}")
        A(f"L_g1_ncs{ks}_{tag}:")
    A(f"s_add_u32 s92, s92, 1\ns_cmp_lt_u32 s92, 8\ns_cbranch_scc1 L_g1_loop_{tag}")
    A(f"s_lshl_b32 s56, s63, 8\ns_add_u32 s56, s56, {L_CS}\nv_lshlrev_b32 v5, 2, v3\nv_add_u32 v5, s56, v5")
    A("s_nop 2\nds_add_f32 v5, v32\nds_add_f32 v5, v33 offset:128")
    A(f"s_lshl_b32 s56, s52, 7\ns_lshl_b32 s58, s62, 5\ns_add_u32 s56, s56, s58\ns_lshl_b32 s56, s56, 4\ns_add_u32 s56, s56, {WS_ST}")
    A(f"v_lshlrev_b32 v6, 4, v3\nbuffer_load_dwordx2 v[8:9], v6, {S_WS}, s56 offen{sc}")
    A("s_waitcnt lgkmcnt(0)\ns_barrier")
    A(f"s_lshl_b32 s56, s63, 8\ns_add_u32 s56, s56, {L_CS}\nv_lshlrev_b32 v5, 4, v4\nv_add_u32 v5, s56, v5")
    C0 = -2.0 * 1.4426950408889634 * 0.7978845608028654
    A(f"v_mov_b32 v10, {f32(C0)}\nv_mov_b32 v11, {f32(C0)}\nv_mov_b32 v12, {f32(C0*0.044715)}\nv_mov_b32 v13, {f32(C0*0.044715)}\nv_mov_b32 v14, 1.0\nv_mov_b32 v15, 1.0")
    A(f"s_lshl_b32 s56, s52, 2\ns_add_u32 s56, s56, s62\ns_mul_i32 s56, s56, 112\ns_lshl_b32 s58, s53, 3\ns_add_u32 s56, s56, s58\ns_lshl_b32 s58, s63, 2\ns_add_u32 s56, s56, s58\ns_lshl_b32 s56, s56, 10\ns_add_u32 s56, s56, {WS_H}")
    A("v_lshlrev_b32 v6, 4, v1")
    for ft in range(2):
        for R in range(4):
            A(f"ds_read_b128 v[{16+4*R}:{19+4*R}], v5 offset:{(32*ft+8*R)*4}")
            A(f"ds_read_b128 v[{32+4*R}:{35+4*R}], v5 offset:{(32*ft+8*R)*4+512}")
        A("s_waitcnt vmcnt(0) lgkmcnt(0)" if ft == 0 else "s_waitcnt lgkmcnt(0)")
        for pr in range(8):
            a = ACC1 + 16 * ft + 2 * pr
            cs, b1 = 16 + 2 * pr, 32 + 2 * pr
            P, Q = f"v[{a}:{a+1}]", f"v[{cs}:{cs+1}]"
            A(f"v_pk_fma_f32 {Q}, {Q}, v[8:9], v[{b1}:{b1+1}] op_sel:[0,1,0] op_sel_hi:[1,1,1]")
            A(f"v_pk_fma_f32 {P}, {P}, v[8:9], {Q} op_sel:[0,0,0] op_sel_hi:[1,0,1]")
            A(f"v_pk_mul_f32 {Q}, {P}, {P}")
            A(f"v_pk_fma_f32 {Q}, {Q}, v[12:13], v[10:11]")
            A(f"v_pk_mul_f32 {Q}, {Q}, {P}")
            A(f"v_exp_f32 v{cs}, v{cs}\nv_exp_f32 v{cs+1}, v{cs+1}")
            A(f"v_pk_add_f32 {Q}, {Q}, v[14:15]")
            A(f"v_rcp_f32 v{cs}, v{cs}\nv_rcp_f32 v{cs+1}, v{cs+1}")
            A(f"v_pk_mul_f32 {P}, {P}, {Q}")
            A(f"v_cvt_pk_bf16_f32 v{48+pr}, v{a}, v{a+1}")
        for i in range(2):
            A(f"buffer_store_dwordx4 v[{48+4*i}:{51+4*i}], v6, {S_WS}, s56 offen offset:{(2*ft+i)*1024}{sc}")
    A(f"L_g1_done_{tag}:")

CACC = 64
CA, CB = 96, 128
def phase_conv(A, tag, sc=""):
    A.comment("conv: channel pair cp = wg; wave: ch = w>>2, wq = w&3")
    A(f"s_lshr_b32 s52, {sW}, 2\ns_and_b32 s53, {sW}, 3")
    A("s_lshl_b32 s54, s2, 2\ns_load_dword s55, s[74:75], s54")
    A(f"s_lshl_b32 s56, s2, 13\ns_lshl_b32 s57, s52, 12\ns_add_u32 s56, s56, s57\ns_lshl_b32 s57, s53, 1\ns_add_u32 s57, s56, s57")
    A(f"s_mul_i32 s58, {sW}, {HC_STRIDE}\ns_add_u32 s58, s58, {L_HC + 32}\ns_mov_b32 m0, s58\nv_lshlrev_b32 v2, 4, v1")
    for i in range(4):
        A(f"buffer_load_dwordx4 v2, {S_SSM}, s57 offen offset:{1024*i} lds")
    A(f"v_mov_b32 v3, 0\nbuffer_load_dwordx2 v[4:5], v3, {S_SSM}, s56 offen")
    A(f"v_lshlrev_b32 v6, 4, v0\ns_lshl_b32 s59, s2, 13\ns_add_u32 s59, s59, {WS_UT}")
    A(f"buffer_load_dwordx4 v[8:11], v6, {S_WS}, s59 offen{sc}")
    A("v_mov_b32 v12, 0\nv_mov_b32 v13, 0\nv_mov_b32 v14, 0\nv_mov_b32 v15, 0")
    A(f"s_mul_i32 s60, s52, {UB_STRIDE}\ns_add_u32 s60, s60, {L_UB}")
    A("v_and_b32 v7, 31, v1\nv_lshlrev_b32 v7, 4, v7\nv_add_u32 v7, s60, v7")
    A("ds_write_b128 v7, v[12:15] offset:4096")
    A("s_waitcnt vmcnt(1)")
    A("v_lshlrev_b64 v[4:5], 16, v[4:5]\ns_sub_u32 s61, 3, s53\ns_lshl_b32 s61, s61, 4\nv_lshlrev_b64 v[14:15], s61, v[4:5]")
    A("s_sub_u32 s58, s58, 32\nv_mov_b32 v7, s58\nv_mov_b32 v16, 0\nv_mov_b32 v17, 0\nv_mov_b32 v18, 0\nv_mov_b32 v19, 0")
    A("ds_write_b128 v7, v[16:19]\nds_write_b128 v7, v[12:15] offset:16")
    A("s_waitcnt vmcnt(0)")
    A(f"v_lshrrev_b32 v7, 8, v0\nv_mul_u32_u24 v7, {UB_STRIDE - 4096}, v7\nv_add_u32 v7, v7, v6\nv_add_u32 v7, {L_UB}, v7")
    A("ds_write_b128 v7, v[8:11]")
    A("v_and_b32 v2, 15, v1\nv_lshrrev_b32 v3, 4, v1")
    A("v_lshlrev_b32 v4, 3, v3\nv_add3_u32 v4, v4, v2, 1")
    A(f"v_and_b32 v5, 3, v4\nv_mul_u32_u24 v5, {HC_STRIDE}, v5\nv_and_b32 v4, 0x3c, v4\nv_lshlrev_b32 v4, 1, v4\nv_add_u32 v4, v4, v5")
    A(f"s_mul_i32 s61, s52, {4*HC_STRIDE}\ns_lshl_b32 s62, s53, 7\ns_add_u32 s61, s61, s62\ns_add_u32 s61, s61, {L_HC}\nv_add_u32 v20, s61, v4")
    A("v_lshlrev_b32 v4, 4, v3\nv_lshlrev_b32 v5, 5, v2\nv_sub_u32 v4, v4, v5\ns_add_u32 s61, s60, s62\ns_add_u32 s61, s61, 480\nv_add_u32 v21, s61, v4")
    for r in range(32): A(f"v_mov_b32 v{CACC+r}, 0")
    A("s_waitcnt lgkmcnt(0)\ns_barrier")
    A("s_mov_b32 s92, 0")
    A(f"L_cv_loop_{tag}:")
    for a in range(8):
        A(f"ds_read_b64 v[{CA+4*a}:{CA+4*a+1}], v20 offset:{512*a}")
        A(f"ds_read_b64 v[{CA+4*a+2}:{CA+4*a+3}], v20 offset:{512*a+8}")
        A(f"ds_read_b128 v[{CB+4*a}:{CB+4*a+3}], v21 offset:{512*(7-a)}")
        if a == 4: pass
    for m in range(8):
        pairs = [(a, b) for a in range(m + 1) for b in range(m + 1) if max(a, b) == m and a + b <= 7]
        A(f"s_waitcnt lgkmcnt({min(15, 3*(7-m))})")
        for a, b in pairs:
            n = a + b
            A(f"v_mfma_f32_16x16x32_bf16 v[{CACC+4*n}:{CACC+4*n+3}], v[{CA+4*a}:{CA+4*a+3}], v[{CB+4*b}:{CB+4*b+3}], v[{CACC+4*n}:{CACC+4*n+3}]")
    A("v_add_u32 v20, 64, v20\nv_add_u32 v21, 64, v21")
    A(f"s_add_u32 s92, s92, 1\ns_cmp_lt_u32 s92, 2\ns_cbranch_scc1 L_cv_loop_{tag}")
    A("v_and_b32 v4, 1, v3\nv_lshrrev_b32 v5, 1, v3\nv_lshlrev_b32 v5, 3, v5\nv_or_b32 v4, v4, v5\nv_xor_b32 v4, v4, v2\nv_lshlrev_b32 v5, 4, v3\nv_add_u32 v4, v4, v5\nv_lshlrev_b32 v4, 4, v4")
    A(f"s_lshl_b32 s61, {sW}, 13\ns_add_u32 s61, s61, {L_RB}\nv_add_u32 v4, s61, v4")
    for n in range(8):
        A(f"ds_write_b128 v4, v[{CACC+4*n}:{CACC+4*n+3}] offset:{1024*n}")
    A("v_lshrrev_b32 v2, 2, v1\nv_and_b32 v3, 3, v1")
    A("v_and_b32 v4, 1, v3\nv_lshrrev_b32 v5, 1, v3\nv_lshlrev_b32 v5, 3, v5\nv_or_b32 v4, v4, v5\nv_xor_b32 v4, v4, v2\nv_lshlrev_b32 v5, 4, v3\nv_add_u32 v4, v4, v5\nv_lshlrev_b32 v4, 4, v4")
    A(f"s_lshl_b32 s61, {sW}, 10\ns_add_u32 s61, s61, {L_RB}\nv_add_u32 v4, s61, v4")
    A(f"s_lshl_b32 s61, {sW}, 9\ns_sub_u32 s61, {L_UB + 4088}, s61\nv_lshlrev_b32 v5, 3, v1\nv_sub_u32 v5, s61, v5")
    A("s_waitcnt lgkmcnt(0)\ns_barrier")
    for pw in range(8):
        A(f"ds_read_b128 v[{CA+4*pw}:{CA+4*pw+3}], v4 offset:{8192*pw}")
    A(f"ds_read_b64 v[8:9], v5\nds_read_b64 v[10:11], v5 offset:{UB_STRIDE}")
    A(f"s_lshl_b32 s61, s55, 16\ns_and_b32 s62, s55, {sMASK}")
    A("s_waitcnt lgkmcnt(0)")
    for ch in range(2):
        b = CA + 16 * ch
        for h in range(2):
            A(f"v_pk_add_f32 v[{b+2*h}:{b+2*h+1}], v[{b+2*h}:{b+2*h+1}], v[{b+4+2*h}:{b+5+2*h}]")
            A(f"v_pk_add_f32 v[{b+8+2*h}:{b+9+2*h}], v[{b+8+2*h}:{b+9+2*h}], v[{b+12+2*h}:{b+13+2*h}]")
            A(f"v_pk_add_f32 v[{b+2*h}:{b+2*h+1}], v[{b+2*h}:{b+2*h+1}], v[{b+8+2*h}:{b+9+2*h}]")
    for r in range(4):
        ur = 9 - (r >> 1)
        for ch in range(2):
            src = f"v{ur + 2*ch}"
            if r & 1: A(f"v_lshlrev_b32 v{12+ch}, 16, {src}")
            else: A(f"v_and_b32 v{12+ch}, {sMASK}, {src}")
            A(f"v_mul_f32 v{12+ch}, s{61+ch}, v{12+ch}")
        A("v_cvt_pk_bf16_f32 v12, v12, v13")
        A(f"v_cvt_pk_bf16_f32 v14, v{CA+r}, v{CA+16+r}")
        A(f"v_and_b32 v13, {sMASK}, v12\nv_lshlrev_b32 v12, 16, v12\nv_and_b32 v15, {sMASK}, v14\nv_lshlrev_b32 v14, 16, v14")
        A(f"v_add_f32 v12, v12, v14\nv_add_f32 v13, v13, v15\nv_cvt_pk_bf16_f32 v{16+r}, v12, v13")
    A(f"s_lshl_b32 s61, s2, 13\ns_lshl_b32 s62, {sW}, 10\ns_add_u32 s61, s61, s62\ns_add_u32 s61, s61, {WS_Z}\nv_lshlrev_b32 v6, 4, v1")
    A(f"buffer_store_dwordx4 v[16:19], v6, {S_WS}, s61 offen{sc}")

W2R = 140
G2ACC = 64
HF = 8
def w2_load(A):
    A.comment("w2 loads: wave ksteps 14w..14w+13; tile dt = j>>2")
    A("v_and_b32 v2, 31, v1\nv_lshrrev_b32 v3, 5, v1\nv_lshlrev_b32 v2, 2, v2\nv_lshlrev_b32 v3, 12, v3\nv_add_u32 v2, v2, v3")
    A(f"s_lshr_b32 s52, {sJ}, 2\ns_lshl_b32 s52, s52, 7\ns_mul_i32 s53, {sW}, {224*1024}\ns_add_u32 s52, s52, s53")
    for s in range(14):
        base = W2R + 4 + 8 * s
        for half in range(2):
            A(f"s_add_u32 s53, s52, {(16*s+8*half)*1024}")
            for e4 in range(4):
                e = 4 * half + e4
                reg = base + (e >> 1) + 4 * (e & 1)
                A(f"buffer_load_dword v{reg}, v2, {S_W2}, s53 offen offset:{e4*1024}")
        if s == 6: A("s_waitcnt vmcnt(20)")
def w2_perm(A):
    A("s_mov_b32 s54, 0x05040100\ns_mov_b32 s55, 0x07060302")
    for s in range(14):
        base = W2R + 4 + 8 * s
        for p in range(4):
            A(f"v_perm_b32 v{base-4+p}, v{base+4+p}, v{base+p}, s54")
        for p in range(4):
            A(f"v_perm_b32 v{base+p}, v{base+4+p}, v{base+p}, s55")
def phase_gemm2(A, tag, sc=""):
    w2_load(A)
    A("s_waitcnt vmcnt(0)")
    w2_perm(A)
    A(f"s_lshl_b32 s56, {sXCD}, 2\ns_and_b32 s57, {sJ}, 3\ns_add_u32 s56, s56, s57\ns_lshr_b32 s57, {sJ}, 2")
    A(f"s_mul_i32 s58, s56, 224\ns_mul_i32 s59, {sW}, 14\ns_add_u32 s58, s58, s59\ns_lshl_b32 s58, s58, 10\ns_add_u32 s58, s58, {WS_H}\nv_lshlrev_b32 v2, 4, v1")
    for r in range(64): A(f"v_mov_b32 v{G2ACC+r}, 0")
    A("v_and_b32 v3, 31, v1\nv_lshrrev_b32 v4, 5, v1\nv_and_b32 v5, 7, v3")
    A(f"s_lshl_b32 s59, {sW}, 14\ns_add_u32 s59, s59, {L_RB2}")
    for R in range(4):
        A(f"v_add_u32 v6, {2*R}, v4\nv_xor_b32 v6, v6, v5\nv_lshl_add_u32 v6, v3, 3, v6\nv_lshlrev_b32 v6, 4, v6\nv_add_u32 v{128+R}, s59, v6")
    for th in range(2):
        for s in range(14):
            A(f"s_add_u32 s60, s58, {(th*112 + s)*1024}")
            A(f"buffer_load_dwordx4 v[{HF+4*s}:{HF+4*s+3}], v2, {S_WS}, s60 offen{sc}")
        for s in range(14):
            A(f"s_waitcnt vmcnt({13-s})")
            for par in range(2):
                acc = G2ACC + 32 * th + 16 * par
                wf = W2R + 8 * s + 4 * par
                A(f"v_mfma_f32_32x32x16_bf16 v[{acc}:{acc+15}], v[{wf}:{wf+3}], v[{HF+4*s}:{HF+4*s+3}], v[{acc}:{acc+15}]")
    for th in range(2):
        for par in range(2):
            for R in range(4):
                acc = G2ACC + 32 * th + 16 * par + 4 * R
                A(f"ds_write_b128 v{128+R}, v[{acc}:{acc+3}] offset:{par*8192 + th*4096}")
    A("v_lshrrev_b32 v2, 4, v0\nv_and_b32 v3, 15, v0\nv_lshlrev_b32 v4, 13, v2\nv_lshlrev_b32 v5, 4, v3\nv_add_u32 v4, v4, v5")
    A(f"s_lshl_b32 s60, s57, 18\ns_lshl_b32 s61, s56, 8\ns_add_u32 s60, s60, s61\ns_add_u32 s60, s60, {WS_Z}")
    A(f"buffer_load_dwordx4 v[8:11], v4, {S_WS}, s60 offen{sc}")
    A("v_lshrrev_b32 v12, 3, v0\nv_and_b32 v13, 7, v0")
    A("s_lshl_b32 s60, s56, 16\ns_lshl_b32 s61, s57, 7\ns_add_u32 s60, s60, s61")
    A("v_lshlrev_b32 v14, 10, v12\nv_lshlrev_b32 v15, 4, v13\nv_add_u32 v14, v14, v15")
    A(f"buffer_load_dwordx4 v[16:19], v14, {S_X}, s60 offen")
    A(f"buffer_load_dwordx4 v[20:23], v15, {S_B2}, s61 offen")
    A(f"s_lshl_b32 s62, s56, 10\ns_add_u32 s62, s62, {WS_ST + 8}\nv_lshlrev_b32 v6, 4, v12")
    A(f"buffer_load_dwordx2 v[24:25], v6, {S_WS}, s62 offen{sc}")
    A(f"v_mul_u32_u24 v5, 576, v3\nv_lshlrev_b32 v4, 2, v2\nv_add_u32 v5, v5, v4\nv_add_u32 v5, {L_ZL}, v5")
    A("s_waitcnt vmcnt(3)")
    for r in range(4): A(f"ds_write_b32 v5, v{8+r} offset:{144*r}")
    A("v_and_b32 v4, 7, v12\nv_xor_b32 v4, v4, v13\nv_lshl_add_u32 v4, v12, 3, v4\nv_lshlrev_b32 v4, 4, v4")
    A(f"v_add_u32 v7, 65536, v4")
    A(f"v_mul_u32_u24 v5, 144, v12\nv_add_u32 v5, v5, v15\nv_add_u32 v5, {L_ZL}, v5")
    A("s_waitcnt lgkmcnt(0)\ns_barrier")
    for pw in range(8):
        for par in range(2):
            a = "v4" if pw < 4 else "v7"
            A(f"ds_read_b128 v[{64+8*pw+4*par}:{67+8*pw+4*par}], {a} offset:{(pw&3)*16384 + par*8192 + L_RB2}")
    A("ds_read_b128 v[8:11], v5")
    A("s_waitcnt lgkmcnt(0)")
    for st in (32, 16, 8):
        for i in range(0, st, 2):
            A(f"v_pk_add_f32 v[{64+i}:{65+i}], v[{64+i}:{65+i}], v[{64+st+i}:{65+st+i}]")
    A("s_waitcnt vmcnt(0)")
    L2E = -1.4426950408889634
    for p in range(4):
        e, o = f"v{64+p}", f"v{68+p}"
        A(f"v_cvt_pk_bf16_f32 v30, {e}, {o}"); unpack(A, e, o, "v30")
        unpack(A, "v30", "v31", f"v{20+p}")
        A(f"v_add_f32 {e}, {e}, v30\nv_add_f32 {o}, {o}, v31\nv_cvt_pk_bf16_f32 v30, {e}, {o}"); unpack(A, e, o, "v30")
        A(f"v_mul_f32 v30, {f32(L2E)}, {e}\nv_mul_f32 v31, {f32(L2E)}, {o}\nv_exp_f32 v30, v30\nv_exp_f32 v31, v31")
        A("v_add_f32 v30, 1.0, v30\nv_add_f32 v31, 1.0, v31\nv_rcp_f32 v30, v30\nv_rcp_f32 v31, v31")
        A(f"v_mul_f32 {e}, {e}, v30\nv_mul_f32 {o}, {o}, v31\nv_cvt_pk_bf16_f32 v30, {e}, {o}"); unpack(A, e, o, "v30")
        unpack(A, "v32", "v33", f"v{16+p}")
        A("v_sub_f32 v34, v32, v24\nv_sub_f32 v35, v33, v24\nv_cvt_pk_bf16_f32 v30, v34, v35"); unpack(A, "v34", "v35", "v30")
        A("v_mul_f32 v34, v34, v25\nv_mul_f32 v35, v35, v25\nv_cvt_pk_bf16_f32 v30, v34, v35"); unpack(A, "v34", "v35", "v30")
        unpack(A, "v36", "v37", f"v{8+p}")
        A("v_mul_f32 v34, v34, v36\nv_mul_f32 v35, v35, v37\nv_cvt_pk_bf16_f32 v30, v34, v35"); unpack(A, "v34", "v35", "v30")
        A(f"v_mul_f32 v34, v34, {e}\nv_mul_f32 v35, v35, {o}\nv_cvt_pk_bf16_f32 v30, v34, v35"); unpack(A, "v34", "v35", "v30")
        A(f"v_add_f32 v34, v34, v32\nv_add_f32 v35, v35, v33\nv_cvt_pk_bf16_f32 v{40+p}, v34, v35")
    A(f"buffer_store_dwordx4 v[40:43], v14, {S_OUT}, s60 offen")

def kernel(name, body_fn, vgpr):
    A = Emitter()
    prologue(A, name)
    body_fn(A, name)
    A(f"L_end_{name}:")
    return f""".globl {name}_kernel
.p2align 8
.type {name}_kernel,@function
{name}_kernel:
{A.finish()}
    s_endpgm
""", f""".p2align 6
.amdhsa_kernel {name}_kernel
  .amdhsa_next_free_vgpr {vgpr}
  .amdhsa_next_free_sgpr 102
  .amdhsa_accum_offset {vgpr}
  .amdhsa_group_segment_fixed_size 0
  .amdhsa_kernarg_size 112
  .amdhsa_user_sgpr_count 2
  .amdhsa_user_sgpr_kernarg_segment_ptr 1
  .amdhsa_system_sgpr_workgroup_id_x 1
.end_amdhsa_kernel
"""

def main(out):
    ks = [("p0", lambda A, t: phase_p0(A), 256), ("g1", phase_gemm1, 256), ("cv", phase_conv, 256), ("g2", phase_gemm2, 256)]
    hdr = "".join(f"; @launch kernel={n}_kernel grid=(256,1,1) block=(512,1,1) lds={LDS_BYTES}\n" for n, _, _ in ks)
    text, ro = "", ""
    for n, fn, vg in ks:
        t, r = kernel(n, fn, vg); text += t; ro += r
    open(out, "w").write(hdr + '.amdgcn_target "amdgcn-amd-amdhsa--gfx950"\n.text\n' + text + '.section .rodata,"a"\n' + ro)
if __name__ == "__main__":
    main(sys.argv[1] if len(sys.argv) > 1 else "v1.s")
```
